```python
import torch

def _softmax(x, axis=-1):
    return torch.softmax(x, dim=axis)

def _gelu(x):
    return torch.nn.functional.gelu(x, approximate='tanh')

def _silu(x):
    return torch.nn.functional.silu(x)

def _sigmoid(x):
    return torch.sigmoid(x)

def _layernorm(x, axis=-1, eps=1e-05):
    m = x.mean(dim=axis, keepdim=True)
    v = x.var(dim=axis, keepdim=True, unbiased=False)
    return (x - m) / torch.sqrt(v + eps)

def _scatter_add(tgt, idx, src, axis=0):
    return tgt.clone().index_add_(axis, idx, src)

def _segment_sum(src, seg, n):
    out = torch.zeros((n,) + src.shape[1:], dtype=src.dtype)
    return out.index_add_(0, seg, src)

def _pad(x, pw):
    flat = tuple((v for pair in reversed(pw) for v in pair))
    return torch.nn.functional.pad(x, flat)
kernel_name = 'gather_scatter__tensor_product_equiv_mace__graph'

def setup_inputs():

    _w = lambda a: (lambda t: t.to(torch.bfloat16) if t.is_floating_point() else t)(torch.as_tensor(a))
    N, deg = (50000, 16)
    Lmax, C, De = (1, 64, 4)
    M = (Lmax + 1) ** 2
    E = N * deg
    src = (lambda lo, hi, *s: torch.randint(lo, hi, s))(0, N, E).to(torch.int64)
    dst = (lambda lo, hi, *s: torch.randint(lo, hi, s))(0, N, E).to(torch.int64)
    r = (lambda *s: torch.randn(*s, dtype=torch.bfloat16) * 0.05)(E, 3).to(float)
    r = r / (torch.linalg.norm(r, dim=-1, keepdim=True).to(float) + 1e-06)
    rx, ry, rz = (r[:, 0].clone(), r[:, 1].clone(), r[:, 2].clone())
    x2, y2, z2 = (rx * rx, ry * ry, rz * rz)
    sh_list = [torch.ones_like(rx), rx, ry, rz, rx * ry, ry * rz, 2.0 * z2 - x2 - y2, rx * rz, x2 - y2, ry * (3.0 * x2 - y2), rx * ry * rz, ry * (4.0 * z2 - x2 - y2), rz * (2.0 * z2 - 3.0 * x2 - 3.0 * y2), rx * (4.0 * z2 - x2 - y2), rz * (x2 - y2), rx * (x2 - 3.0 * y2)]
    sh16 = torch.stack(sh_list, dim=-1).to(float)
    pad = max(0, M - 16)
    sh_full = torch.cat([sh16, torch.zeros((E, pad), dtype=float)], dim=-1)[:, :M]
    cg = ((lambda *s: torch.randn(*s, dtype=torch.bfloat16) * 0.05)(M, M, M) * (1.0 / float(M))).to(float)
    return {'x': _w(((lambda *s: torch.randn(*s, dtype=torch.bfloat16) * 0.05)(N, M, C) * 0.3).to(float)), 'src': _w(src), 'dst': _w(dst), 'sh': _w(sh_full.to(float)), 'edge_attr': _w(((lambda *s: torch.randn(*s, dtype=torch.bfloat16) * 0.05)(E, De) * 0.3).to(float)), 'cg': _w(cg), 'w_r': _w(((lambda *s: torch.randn(*s, dtype=torch.bfloat16) * 0.05)(De, C) * (1.0 / float(De) ** 0.5)).to(float)), 'w_out': _w(((lambda *s: torch.randn(*s, dtype=torch.bfloat16) * 0.05)(C, C) * (1.0 / float(C) ** 0.5)).to(float))}

def reference(x, src, dst, sh, edge_attr, cg, w_r, w_out):
    N = x.shape[0]
    M = x.shape[1]
    C = x.shape[2]
    h = x[src]
    tp = torch.einsum('uvw,euc,ev->ewc', cg, h, sh)
    rw = edge_attr @ w_r
    msg = tp * rw[:, None, :]
    msg2 = msg.reshape(-1, M * C)
    agg = _segment_sum(msg2, dst, N).reshape(N, M, C)
    out = torch.einsum('nmc,cd->nmd', agg, w_out)
    return out
```

```python
D = 3
CAP = 4096
L = []
def o(s): L.append("    " + s)
def lab(s): L.append(s + ":")
uid = [0]
def U(p):
    uid[0] += 1
    return f"{p}_{uid[0]}"

def srd(d, b, size, off=0):
    if off:
        o(f"s_add_u32 s{d}, s{b}, {off}")
        o(f"s_addc_u32 s{d+1}, s{b+1}, 0")
    else:
        o(f"s_mov_b32 s{d}, s{b}")
        o(f"s_mov_b32 s{d+1}, s{b+1}")
    o(f"s_mov_b32 s{d+2}, {size}")
    o(f"s_mov_b32 s{d+3}, 0x00020000")

def wave_scan(v):
    o("v_and_b32 v60, 63, v0")
    for off in [1,2,4,8,16,32]:
        o(f"v_subrev_u32 v61, {off}, v60")
        o("v_lshlrev_b32 v61, 2, v61")
        o(f"ds_bpermute_b32 v61, v61, v{v}")
        o(f"v_cmp_le_u32 vcc, {off}, v60")
        o("s_waitcnt lgkmcnt(0)")
        o("v_cndmask_b32 v61, 0, v61, vcc")
        o(f"v_add_u32 v{v}, v{v}, v61")
    o("s_nop 1")

TAB_SZ = 257*256*4
RS_OFF, RS_SZ = 0x100000, 3200000
RF_OFF, RF_SZ = 0x500000, 12800000

hdr = open('gather_scatter__tensor_product_equiv_mace__graph.s.ref').read().split('\n')
out = [l for l in hdr if l.startswith(';') and '@launch' not in l]
out.append("; @launch kernel=sort_kernel grid=(256,1,1) block=(1024,1,1) lds=2048")
out.append("; @launch kernel=main_kernel grid=(256,1,1) block=(512,1,1) lds=114688")
out.append('.amdgcn_target "amdgcn-amd-amdhsa--gfx950"')
out.append(".text")

L.append(".globl sort_kernel\n.p2align 8\n.type sort_kernel,@function")
lab("sort_kernel")
o("s_cmp_ge_u32 s2, 256")
o("s_cbranch_scc1 A_end")
o("s_load_dwordx2 s[4:5], s[0:1], 8")
o("s_load_dwordx2 s[6:7], s[0:1], 16")
o("s_load_dwordx2 s[8:9], s[0:1], 24")
o("s_load_dwordx2 s[10:11], s[0:1], 32")
o("s_load_dwordx2 s[12:13], s[0:1], 80")
o("s_waitcnt lgkmcnt(0)")
srd(16, 4, 3200000); srd(20, 6, 3200000); srd(24, 8, 6400000); srd(28, 10, 6400000)
srd(32, 12, TAB_SZ); srd(36, 12, RS_SZ, RS_OFF); srd(40, 12, RF_SZ, RF_OFF)
o("s_mul_i32 s3, s2, 3125")
o("v_add_u32 v1, s3, v0")
o("v_lshlrev_b32 v2, 2, v1")
o("v_lshlrev_b32 v3, 3, v1")
o("v_lshlrev_b32 v4, 2, v0")
o("v_mov_b32 v5, 0")
o("v_mov_b32 v6, 1")
o("s_mov_b32 s50, 21913099")
o("v_cmp_gt_u32 vcc, 256, v0")
o("s_and_saveexec_b64 s[46:47], vcc")
o("s_cbranch_execz A_z")
o("ds_write_b32 v4, v5")
lab("A_z")
o("s_mov_b64 exec, s[46:47]")
o("v_cmp_gt_u32 s[48:49], 53, v0")
for k in range(4):
    if k == 3:
        o("s_mov_b64 exec, s[48:49]")
        o("s_cbranch_execz A_l3")
    o(f"s_mov_b32 s44, {4096*k}")
    o(f"s_mov_b32 s45, {8192*k}")
    o(f"buffer_load_dword v{8+k}, v2, s[20:23], s44 offen")
    o(f"buffer_load_dword v{12+k}, v2, s[16:19], s44 offen")
    o(f"buffer_load_dwordx2 v[{16+4*k}:{17+4*k}], v3, s[24:27], s45 offen")
    o(f"buffer_load_dwordx2 v[{18+4*k}:{19+4*k}], v3, s[28:31], s45 offen")
lab("A_l3")
o("s_mov_b64 exec, -1")
o("s_waitcnt lgkmcnt(0)")
o("s_barrier")
for k in range(4):
    if k == 3:
        o("s_mov_b64 exec, s[48:49]")
        o("s_cbranch_execz A_h3")
    o("s_waitcnt vmcnt(0)")
    o(f"v_mul_hi_u32 v{32+k}, v{8+k}, s50")
    o(f"v_min_u32 v{32+k}, 255, v{32+k}")
    o(f"v_mul_u32_u24 v7, 196, v{32+k}")
    o(f"v_sub_u32 v{36+k}, v{8+k}, v7")
    o(f"v_min_u32 v{36+k}, 195, v{36+k}")
    o(f"v_lshlrev_b32 v7, 2, v{32+k}")
    o(f"ds_add_rtn_u32 v{40+k}, v7, v6")
lab("A_h3")
o("s_mov_b64 exec, -1")
o("s_waitcnt lgkmcnt(0)")
o("s_barrier")
o("v_lshrrev_b32 v7, 6, v0")
o("s_nop 0")
o("v_readfirstlane_b32 s51, v7")
o("s_cmp_ge_u32 s51, 4")
o("s_cbranch_scc1 A_s1")
o("ds_read_b32 v44, v4")
o("s_waitcnt lgkmcnt(0)")
o("v_mov_b32 v45, v44")
wave_scan(45)
o("v_readlane_b32 s52, v45, 63")
o("v_mov_b32 v7, s51")
o("v_lshlrev_b32 v7, 2, v7")
o("v_mov_b32 v46, s52")
o("ds_write_b32 v7, v46 offset:1024")
lab("A_s1")
o("s_waitcnt lgkmcnt(0)")
o("s_barrier")
o("s_cmp_ge_u32 s51, 4")
o("s_cbranch_scc1 A_s2")
o("ds_read_b128 v[48:51], v5 offset:1024")
o("s_waitcnt lgkmcnt(0)")
o("v_sub_u32 v45, v45, v44")
for w in range(3):
    o(f"s_cmp_gt_u32 s51, {w}")
    o(f"s_cselect_b32 s52, -1, 0")
    o(f"v_and_b32 v7, s52, v{48+w}")
    o("v_add_u32 v45, v45, v7")
o("ds_write_b32 v4, v45")
o("s_lshl_b32 s53, s2, 2")
o("v_lshlrev_b32 v7, 10, v0")
o("v_add_u32 v7, s53, v7")
o("buffer_store_dword v45, v7, s[32:35], 0 offen")
o("v_add_u32 v7, 1024, v7")
o("v_add_u32 v46, v45, v44")
o("v_cmp_eq_u32 vcc, 255, v0")
o("s_and_saveexec_b64 s[46:47], vcc")
o("s_cbranch_execz A_s3")
o("buffer_store_dword v46, v7, s[32:35], 0 offen")
lab("A_s3")
o("s_mov_b64 exec, -1")
lab("A_s2")
o("s_waitcnt lgkmcnt(0)")
o("s_barrier")
for k in range(4):
    if k == 3:
        o("s_mov_b64 exec, s[48:49]")
        o("s_cbranch_execz A_w3")
    o(f"v_lshlrev_b32 v7, 2, v{32+k}")
    o("ds_read_b32 v44, v7")
    o(f"v_and_b32 v{12+k}, 0xffff, v{12+k}")
    o(f"v_lshl_or_b32 v{12+k}, v{36+k}, 16, v{12+k}")
    o("s_waitcnt lgkmcnt(0)")
    o(f"v_add3_u32 v44, v44, v{40+k}, s3")
    o("v_lshlrev_b32 v45, 2, v44")
    o("v_lshlrev_b32 v46, 4, v44")
    o(f"buffer_store_dword v{12+k}, v45, s[36:39], 0 offen")
    o(f"buffer_store_dwordx4 v[{16+4*k}:{19+4*k}], v46, s[40:43], 0 offen")
lab("A_w3")
lab("A_end")
o("s_endpgm")

NST, CUR, CTR, WTOT, WFR, STG, LSRC, LF = 0, 2048, 4096, 4112, 8192, 16384, 32768, 49152
CG, WR, ACC, BP, AH, AL, F = 16, 32, 48, 64, 68, 72, 76
T0 = 84
BUF = 104
VI8, VG2, VSH = 1, 2, 3
SX, SO, SNB = 16, 20, 60
ST = 64
L.append(".globl main_kernel\n.p2align 8\n.type main_kernel,@function")
lab("main_kernel")
o("s_cmp_ge_u32 s2, 256")
o("s_cbranch_scc1 B_end")
o("s_load_dwordx2 s[4:5], s[0:1], 0")
o("s_load_dwordx2 s[6:7], s[0:1], 40")
o("s_load_dwordx2 s[8:9], s[0:1], 48")
o("s_load_dwordx2 s[10:11], s[0:1], 56")
o("s_load_dwordx2 s[12:13], s[0:1], 64")
o("s_load_dwordx2 s[14:15], s[0:1], 80")
o("s_waitcnt lgkmcnt(0)")
srd(SX, 4, 25600000); srd(SO, 12, 25600000)
srd(24, 6, 128); srd(28, 8, 512); srd(32, 10, 8192)
srd(36, 14, TAB_SZ); srd(40, 14, RS_SZ, RS_OFF); srd(44, 14, RF_SZ, RF_OFF)
o("s_mul_i32 s3, s2, 196")
o("s_sub_u32 s60, 50000, s3")
o("s_min_u32 s60, s60, 196")
o("v_and_b32 v4, 63, v0")
o("v_and_b32 v5, 15, v4")
o("v_lshrrev_b32 v6, 4, v4")
o("v_lshrrev_b32 v7, 6, v0")
o("s_nop 0")
o("v_readfirstlane_b32 s61, v7")
o(f"v_lshlrev_b32 v{VI8}, 3, v5")
o(f"v_lshlrev_b32 v{VG2}, 1, v6")
o("v_lshrrev_b32 v8, 2, v5")
o("v_and_b32 v9, 3, v5")
o("v_and_b32 v10, 1, v9")
o("v_xor_b32 v10, 1, v10")
o(f"v_lshlrev_b32 v{VSH}, 4, v10")
o("v_cmp_lt_u32 s[62:63], 1, v9")
o("v_lshlrev_b32 v10, 1, v8")
for u in range(4):
    for v in range(4):
        o(f"buffer_load_ushort v{CG+4*u+v}, v10, s[24:27], 0 offen offset:{(u*16+v*4)*2}")
for r in range(4):
    o(f"buffer_load_dwordx2 v[{T0+2*r}:{T0+2*r+1}], v{VI8}, s[28:31], 0 offen offset:{128*r}")
o("s_lshr_b32 s50, s61, 1")
o("s_and_b32 s51, s61, 1")
o("s_lshl_b32 s50, s50, 3")
o("s_lshl_b32 s51, s51, 12")
o("s_add_u32 s50, s50, s51")
o("v_lshlrev_b32 v10, 5, v8")
o("v_lshl_add_u32 v10, v9, 1, v10")
o("v_lshl_add_u32 v10, v6, 10, v10")
for r in range(4):
    o(f"buffer_load_ushort v{T0+8+r}, v10, s[32:35], s50 offen offset:{256*r}")
    o(f"buffer_load_ushort v{T0+12+r}, v10, s[32:35], s50 offen offset:{256*r+128}")
o("v_lshrrev_b32 v11, 1, v0")
o("v_and_b32 v12, 1, v0")
o("s_lshl_b32 s52, s2, 10")
o("v_lshl_add_u32 v13, v11, 2, s52")
o("buffer_load_dword v14, v13, s[36:39], 0 offen")
o("buffer_load_dword v15, v13, s[36:39], 0 offen offset:1024")
o("v_mov_b32 v10, 0")
o("v_lshlrev_b32 v13, 2, v0")
o("v_cmp_gt_u32 vcc, 264, v0")
o("s_and_saveexec_b64 s[54:55], vcc")
o("s_cbranch_execz B_z")
o(f"ds_write_b32 v13, v10 offset:{NST}")
lab("B_z")
o("s_mov_b64 exec, -1")
o(f"ds_write_b32 v10, v10 offset:{CTR}")
o("s_waitcnt vmcnt(0)")
for k in range(16):
    o(f"v_lshlrev_b32 v{CG+k}, 16, v{CG+k}")
for r in range(4):
    o(f"v_lshlrev_b32 v{WR+4*r}, 16, v{T0+2*r}")
    o(f"v_and_b32 v{WR+4*r+1}, 0xffff0000, v{T0+2*r}")
    o(f"v_lshlrev_b32 v{WR+4*r+2}, 16, v{T0+2*r+1}")
    o(f"v_and_b32 v{WR+4*r+3}, 0xffff0000, v{T0+2*r+1}")
for r in range(4): o(f"v_lshl_or_b32 v{T0+8+r}, v{T0+12+r}, 16, v{T0+8+r}")
o("v_lshlrev_b32 v10, 4, v0")
o(f"ds_write_b128 v10, v[{T0+8}:{T0+11}] offset:{WFR}")
o("v_mul_u32_u24 v10, 3125, v11")
o("v_add_u32 v15, v15, v10")
o("v_add3_u32 v14, v14, v10, v12")
o("s_waitcnt lgkmcnt(0)")
o("s_barrier")
o("v_mov_b32 v102, 1")
def pass_loop(second):
    a, e = U("pl"), U("pe")
    o("v_mov_b32 v10, v14")
    lab(a)
    o("v_cmp_lt_u32 vcc, v10, v15")
    o("s_and_b64 exec, exec, vcc")
    o(f"s_cbranch_execz {e}")
    o("v_lshlrev_b32 v13, 2, v10")
    o("buffer_load_dword v11, v13, s[40:43], 0 offen")
    if second:
        o("v_lshlrev_b32 v13, 4, v10")
        o(f"buffer_load_dwordx4 v[{T0}:{T0+3}], v13, s[44:47], 0 offen")
    o("s_waitcnt vmcnt(0)")
    o("v_lshrrev_b32 v12, 14, v11")
    o("v_and_b32 v12, 0x3fc, v12")
    if not second:
        o(f"ds_add_u32 v12, v102 offset:{NST}")
    else:
        o(f"ds_add_rtn_u32 v12, v12, v102 offset:{CUR}")
        o("v_and_b32 v11, 0xffff, v11")
        o("s_waitcnt lgkmcnt(0)")
        o(f"v_min_u32 v12, {CAP-1}, v12")
        o("v_lshlrev_b32 v13, 2, v12")
        o(f"ds_write_b32 v13, v11 offset:{LSRC}")
        o("v_lshlrev_b32 v13, 4, v12")
        o(f"ds_write_b128 v13, v[{T0}:{T0+3}] offset:{LF}")
    o("v_add_u32 v10, 2, v10")
    o(f"s_branch {a}")
    lab(e)
    o("s_mov_b64 exec, -1")
    o("s_waitcnt lgkmcnt(0)")
    o("s_barrier")
pass_loop(False)
o("s_cmp_ge_u32 s61, 4")
o("s_cbranch_scc1 B_s1")
o("v_lshlrev_b32 v13, 2, v0")
o(f"ds_read_b32 v10, v13 offset:{NST}")
o("s_waitcnt lgkmcnt(0)")
o("v_mov_b32 v11, v10")
wave_scan(11)
o("v_readlane_b32 s52, v11, 63")
o("s_lshl_b32 s53, s61, 2")
o("v_mov_b32 v12, s53")
o("v_mov_b32 v9, s52")
o(f"ds_write_b32 v12, v9 offset:{WTOT}")
lab("B_s1")
o("s_waitcnt lgkmcnt(0)")
o("s_barrier")
o("s_cmp_ge_u32 s61, 4")
o("s_cbranch_scc1 B_s2")
o("v_mov_b32 v12, 0")
o(f"ds_read_b128 v[{T0}:{T0+3}], v12 offset:{WTOT}")
o("s_waitcnt lgkmcnt(0)")
o("v_sub_u32 v11, v11, v10")
for w in range(3):
    o(f"s_cmp_gt_u32 s61, {w}")
    o("s_cselect_b32 s52, -1, 0")
    o(f"v_and_b32 v12, s52, v{T0+w}")
    o("v_add_u32 v11, v11, v12")
o(f"ds_write_b32 v13, v11 offset:{NST}")
o(f"ds_write_b32 v13, v11 offset:{CUR}")
lab("B_s2")
o("s_waitcnt lgkmcnt(0)")
o("s_barrier")
pass_loop(True)
o("s_mov_b32 s56, 0")
o("s_mov_b32 s57, 0")
o("s_mov_b32 s58, 0")
o("s_mov_b32 s59, 0")
o("s_mov_b32 s48, 0x05040100")
o("s_mov_b32 s49, 0x07060302")
o("s_lshl_b32 s79, s61, 11")
o(f"s_add_u32 s79, s79, {STG}")
for k in range(16): o(f"v_mov_b32 v{ACC+k}, 0")
o("v_mov_b32 v101, 0x80000000")
o("v_mov_b32 v100, -1")

def next_issue(bi):
    st = ST + 3*bi
    h, dn, go = U("nh"), U("nd"), U("ng")
    o("s_cmp_lt_u32 s56, s57")
    o(f"s_cbranch_scc1 {h}")
    o("s_mov_b64 exec, 1")
    o("v_mov_b32 v10, 0")
    o(f"ds_add_rtn_u32 v10, v10, v102 offset:{CTR}")
    o("s_waitcnt lgkmcnt(0)")
    o("v_readfirstlane_b32 s58, v10")
    o("s_mov_b64 exec, -1")
    o("s_cmp_ge_u32 s58, s60")
    o(f"s_cbranch_scc1 {dn}")
    o("s_lshl_b32 s52, s58, 2")
    o("v_mov_b32 v10, s52")
    o(f"ds_read2_b32 v[10:11], v10 offset0:0 offset1:1")
    L[-1] = f"    ds_read2_b32 v[10:11], v12 offset0:0 offset1:1"
    L.insert(len(L)-1, f"    v_add_u32 v12, {NST}, v10")
    o("s_waitcnt lgkmcnt(0)")
    o("v_readfirstlane_b32 s56, v10")
    o("v_readfirstlane_b32 s57, v11")
    o(f"s_branch {h}")
    lab(dn)
    o("s_mov_b32 s58, -1")
    o("s_mov_b32 s56, 0")
    o("s_mov_b32 s57, 0")
    lab(h)
    o(f"s_mov_b32 s{st}, s56")
    o(f"s_mov_b32 s{st+1}, s57")
    o(f"s_mov_b32 s{st+2}, s58")
    o("s_add_u32 s56, s56, 8")
    o(f"v_add_u32 v10, s{st}, v{VG2}")
    o("v_lshlrev_b32 v11, 2, v10")
    o(f"v_add_u32 v11, {LSRC}, v11")
    o(f"ds_read2_b32 v[12:13], v11 offset0:0 offset1:1")
    o("v_add_u32 v11, 1, v10")
    o(f"v_cmp_gt_u32 vcc, s{st+1}, v10")
    o(f"v_cmp_gt_u32 s[54:55], s{st+1}, v11")
    o("s_waitcnt lgkmcnt(0)")
    o(f"v_lshl_add_u32 v12, v12, 9, v{VI8}")
    o(f"v_lshl_add_u32 v13, v13, 9, v{VI8}")
    o("v_cndmask_b32 v12, v101, v12, vcc")
    o("v_cndmask_b32 v13, v101, v13, s[54:55]")
    b = BUF + 16*bi
    for u in range(4):
        o(f"buffer_load_dwordx2 v[{b+2*u}:{b+2*u+1}], v12, s[{SX}:{SX+3}], 0 offen offset:{128*u}")
    for u in range(4):
        o(f"buffer_load_dwordx2 v[{b+8+2*u}:{b+9+2*u}], v13, s[{SX}:{SX+3}], 0 offen offset:{128*u}")

def flush():
    o("v_lshlrev_b32 v10, 7, v5")
    o("v_lshl_add_u32 v10, v6, 4, v10")
    o("v_add_u32 v10, s79, v10")
    o(f"ds_read_b128 v[{T0}:{T0+3}], v10")
    o(f"ds_read_b128 v[{T0+4}:{T0+7}], v10 offset:64")
    o("v_lshlrev_b32 v11, 4, v4")
    for j in range(4):
        o(f"ds_read_b128 v[{BP}:{BP+3}], v11 offset:{WFR+2048*j}")
        o(f"ds_read_b128 v[{F}:{F+3}], v11 offset:{WFR+2048*j+1024}")
        o("s_waitcnt lgkmcnt(0)")
        o(f"v_mfma_f32_16x16x32_bf16 v[{AH}:{AH+3}], v[{BP}:{BP+3}], v[{T0}:{T0+3}], 0")
        o(f"v_mfma_f32_16x16x32_bf16 v[{AH}:{AH+3}], v[{F}:{F+3}], v[{T0+4}:{T0+7}], v[{AH}:{AH+3}]")
        o("s_nop 9")
        o(f"v_cvt_pk_bf16_f32 v{T0+8+2*j}, v{AH}, v{AH+1}")
        o(f"v_cvt_pk_bf16_f32 v{T0+9+2*j}, v{AH+2}, v{AH+3}")
    o("v_lshrrev_b32 v10, 2, v5")
    o("v_lshlrev_b32 v10, 2, v10")
    o("ds_bpermute_b32 v10, v10, v100")
    o("v_and_b32 v11, 3, v5")
    o("v_lshlrev_b32 v11, 7, v11")
    o("v_lshl_add_u32 v11, v6, 5, v11")
    o("s_waitcnt lgkmcnt(0)")
    o("v_cmp_gt_u32 vcc, 0x10000, v10")
    o("v_lshl_add_u32 v10, v10, 9, v11")
    o("s_nop 0")
    o("v_cndmask_b32 v10, v101, v10, vcc")
    o(f"buffer_store_dwordx4 v[{T0+8}:{T0+11}], v10, s[{SO}:{SO+3}], 0 offen")
    o(f"buffer_store_dwordx4 v[{T0+12}:{T0+15}], v10, s[{SO}:{SO+3}], 0 offen offset:16")
    o("s_nop 1")
    o("v_mov_b32 v100, -1")
    o("s_mov_b32 s59, 0")

def compute(bi):
    st = ST + 3*bi
    b = BUF + 16*bi
    o(f"s_cmp_eq_u32 s{st+2}, -1")
    o("s_cbranch_scc1 B_done")
    o(f"v_add_u32 v10, s{st}, v{VG2}")
    o("v_lshlrev_b32 v11, 4, v10")
    o(f"ds_read_b128 v[{F}:{F+3}], v11 offset:{LF}")
    o(f"ds_read_b128 v[{F+4}:{F+7}], v11 offset:{LF+16}")
    o("v_add_u32 v11, 1, v10")
    o(f"v_cmp_gt_u32 vcc, s{st+1}, v10")
    o(f"v_cmp_gt_u32 s[54:55], s{st+1}, v11")
    o("s_waitcnt lgkmcnt(0)")
    for e in range(2):
        f = F + 4*e
        t = T0
        o(f"v_lshlrev_b32 v{t}, 16, v{f}")
        o(f"v_and_b32 v{t+1}, 0xffff0000, v{f}")
        o(f"v_lshlrev_b32 v{t+2}, 16, v{f+1}")
        o(f"v_and_b32 v{t+3}, 0xffff0000, v{f+1}")
        o(f"v_cndmask_b32 v{t+4}, v{f+2}, v{f+3}, s[62:63]")
        o(f"v_lshlrev_b32 v{t+4}, v{VSH}, v{t+4}")
        o(f"v_and_b32 v{t+4}, 0xffff0000, v{t+4}")
        o(f"v_cndmask_b32 v{t+4}, 0, v{t+4}, " + ("vcc" if e == 0 else "s[54:55]"))
        for u in range(4):
            c = t + 8 + 4*e + u
            o(f"v_mul_f32 v{c}, v{CG+4*u}, v{t}")
            for v in range(1, 4):
                o(f"v_fmac_f32 v{c}, v{CG+4*u+v}, v{t+v}")
            o(f"v_mul_f32 v{c}, v{c}, v{t+4}")
    for r in range(4):
        c0, c1 = T0+8+2*r, T0+9+2*r
        o(f"v_cvt_pk_bf16_f32 v{AH+r}, v{c0}, v{c1}")
        o(f"v_lshlrev_b32 v10, 16, v{AH+r}")
        o(f"v_and_b32 v11, 0xffff0000, v{AH+r}")
        o(f"v_sub_f32 v10, v{c0}, v10")
        o(f"v_sub_f32 v11, v{c1}, v11")
        o(f"v_cvt_pk_bf16_f32 v{AL+r}, v10, v11")
    o(f"s_waitcnt vmcnt({8*(D-1)})")
    for j in range(4):
        sel = "s48" if (j & 1) == 0 else "s49"
        for r in range(4):
            o(f"v_perm_b32 v{BP+r}, v{b+2*(2*r+1)+(j>>1)}, v{b+2*(2*r)+(j>>1)}, {sel}")
        o("s_nop 1")
        o(f"v_mfma_f32_16x16x32_bf16 v[{ACC+4*j}:{ACC+4*j+3}], v[{AH}:{AH+3}], v[{BP}:{BP+3}], v[{ACC+4*j}:{ACC+4*j+3}]")
        o(f"v_mfma_f32_16x16x32_bf16 v[{ACC+4*j}:{ACC+4*j+3}], v[{AL}:{AL+3}], v[{BP}:{BP+3}], v[{ACC+4*j}:{ACC+4*j+3}]")
    nl = U("nl")
    o(f"s_add_u32 s52, s{st}, 8")
    o(f"s_cmp_lt_u32 s52, s{st+1}")
    o(f"s_cbranch_scc1 {nl}")
    o("s_nop 9")
    for j in range(4):
        o(f"v_mul_f32 v{T0+j}, v{WR+j}, v{ACC+4*j}")
        for r in range(1, 4):
            o(f"v_fmac_f32 v{T0+j}, v{WR+4*r+j}, v{ACC+4*j+r}")
    o(f"v_cvt_pk_bf16_f32 v{T0+4}, v{T0}, v{T0+1}")
    o(f"v_cvt_pk_bf16_f32 v{T0+5}, v{T0+2}, v{T0+3}")
    o("s_lshl_b32 s52, s59, 9")
    o("s_add_u32 s52, s52, s79")
    o("v_lshlrev_b32 v10, 7, v6")
    o(f"v_add_u32 v10, v10, v{VI8}")
    o("v_add_u32 v10, s52, v10")
    o(f"ds_write_b64 v10, v[{T0+4}:{T0+5}]")
    for k in range(16): o(f"v_mov_b32 v{ACC+k}, 0")
    o(f"s_add_u32 s52, s{st+2}, s3")
    o("s_mov_b32 m0, s59")
    o("s_nop 0")
    o("v_writelane_b32 v100, s52, m0")
    o("s_add_u32 s59, s59, 1")
    o("s_cmp_lt_u32 s59, 4")
    o(f"s_cbranch_scc1 {nl}")
    flush()
    lab(nl)

for bi in range(D-1): next_issue(bi)
lab("B_loop")
for s in range(D):
    next_issue((s + D - 1) % D)
    compute(s)
o("s_branch B_loop")
lab("B_done")
o("s_cmp_eq_u32 s59, 0")
o("s_cbranch_scc1 B_end")
flush()
lab("B_end")
o("s_endpgm")

out += L
def desc(name, vg):
    return f""".amdhsa_kernel {name}
  .amdhsa_next_free_vgpr {vg}
  .amdhsa_next_free_sgpr 102
  .amdhsa_accum_offset {vg}
  .amdhsa_group_segment_fixed_size 0
  .amdhsa_kernarg_size 88
  .amdhsa_user_sgpr_count 2
  .amdhsa_user_sgpr_kernarg_segment_ptr 1
  .amdhsa_system_sgpr_workgroup_id_x 1
.end_amdhsa_kernel"""
out.append('.section .rodata,"a"\n.p2align 6')
out.append(desc("sort_kernel", 64))
out.append(".p2align 6")
out.append(desc("main_kernel", 256))
open('gather_scatter__tensor_product_equiv_mace__graph.s', 'w').write("\n".join(out) + "\n")
```

```python
D = 3
CAP = 4096
L = []
def o(s): L.append("    " + s)
def lab(s): L.append(s + ":")
uid = [0]
def U(p):
    uid[0] += 1
    return f"{p}_{uid[0]}"

def srd(d, b, size, off=0):
    if off:
        o(f"s_add_u32 s{d}, s{b}, {off}")
        o(f"s_addc_u32 s{d+1}, s{b+1}, 0")
    else:
        o(f"s_mov_b32 s{d}, s{b}")
        o(f"s_mov_b32 s{d+1}, s{b+1}")
    o(f"s_mov_b32 s{d+2}, {size}")
    o(f"s_mov_b32 s{d+3}, 0x00020000")

def wave_scan(v):
    o("v_and_b32 v60, 63, v0")
    for off in [1,2,4,8,16,32]:
        o(f"v_subrev_u32 v61, {off}, v60")
        o("v_lshlrev_b32 v61, 2, v61")
        o(f"ds_bpermute_b32 v61, v61, v{v}")
        o(f"v_cmp_le_u32 vcc, {off}, v60")
        o("s_waitcnt lgkmcnt(0)")
        o("v_cndmask_b32 v61, 0, v61, vcc")
        o(f"v_add_u32 v{v}, v{v}, v61")
    o("s_nop 1")

TAB_SZ = 257*256*4
RS_OFF, RS_SZ = 0x100000, 3200000
RF_OFF, RF_SZ = 0x500000, 12800000

hdr = open('gather_scatter__tensor_product_equiv_mace__graph.s.ref').read().split('\n')
out = [l for l in hdr if l.startswith(';') and '@launch' not in l]
out.append("; @launch kernel=sort_kernel grid=(256,1,1) block=(1024,1,1) lds=2048")
out.append("; @launch kernel=main_kernel grid=(256,1,1) block=(512,1,1) lds=114688")
out.append('.amdgcn_target "amdgcn-amd-amdhsa--gfx950"')
out.append(".text")

L.append(".globl sort_kernel\n.p2align 8\n.type sort_kernel,@function")
lab("sort_kernel")
o("s_cmp_ge_u32 s2, 256")
o("s_cbranch_scc1 A_end")
o("s_load_dwordx2 s[4:5], s[0:1], 8")
o("s_load_dwordx2 s[6:7], s[0:1], 16")
o("s_load_dwordx2 s[8:9], s[0:1], 24")
o("s_load_dwordx2 s[10:11], s[0:1], 32")
o("s_load_dwordx2 s[12:13], s[0:1], 80")
o("s_waitcnt lgkmcnt(0)")
srd(16, 4, 3200000); srd(20, 6, 3200000); srd(24, 8, 6400000); srd(28, 10, 6400000)
srd(32, 12, TAB_SZ); srd(36, 12, RS_SZ, RS_OFF); srd(40, 12, RF_SZ, RF_OFF)
o("s_mul_i32 s3, s2, 3125")
o("v_add_u32 v1, s3, v0")
o("v_lshlrev_b32 v2, 2, v1")
o("v_lshlrev_b32 v3, 3, v1")
o("v_lshlrev_b32 v4, 2, v0")
o("v_mov_b32 v5, 0")
o("v_mov_b32 v6, 1")
o("s_mov_b32 s50, 21913099")
o("v_cmp_gt_u32 vcc, 256, v0")
o("s_and_saveexec_b64 s[46:47], vcc")
o("s_cbranch_execz A_z")
o("ds_write_b32 v4, v5")
lab("A_z")
o("s_mov_b64 exec, s[46:47]")
o("v_cmp_gt_u32 s[48:49], 53, v0")
for k in range(4):
    if k == 3:
        o("s_mov_b64 exec, s[48:49]")
        o("s_cbranch_execz A_l3")
    o(f"s_mov_b32 s44, {4096*k}")
    o(f"s_mov_b32 s45, {8192*k}")
    o(f"buffer_load_dword v{8+k}, v2, s[20:23], s44 offen")
    o(f"buffer_load_dword v{12+k}, v2, s[16:19], s44 offen")
    o(f"buffer_load_dwordx2 v[{16+4*k}:{17+4*k}], v3, s[24:27], s45 offen")
    o(f"buffer_load_dwordx2 v[{18+4*k}:{19+4*k}], v3, s[28:31], s45 offen")
lab("A_l3")
o("s_mov_b64 exec, -1")
o("s_waitcnt lgkmcnt(0)")
o("s_barrier")
for k in range(4):
    if k == 3:
        o("s_mov_b64 exec, s[48:49]")
        o("s_cbranch_execz A_h3")
    o("s_waitcnt vmcnt(0)")
    o(f"v_mul_hi_u32 v{32+k}, v{8+k}, s50")
    o(f"v_min_u32 v{32+k}, 255, v{32+k}")
    o(f"v_mul_u32_u24 v7, 196, v{32+k}")
    o(f"v_sub_u32 v{36+k}, v{8+k}, v7")
    o(f"v_min_u32 v{36+k}, 195, v{36+k}")
    o(f"v_lshlrev_b32 v7, 2, v{32+k}")
    o(f"ds_add_rtn_u32 v{40+k}, v7, v6")
lab("A_h3")
o("s_mov_b64 exec, -1")
o("s_waitcnt lgkmcnt(0)")
o("s_barrier")
o("v_lshrrev_b32 v7, 6, v0")
o("s_nop 0")
o("v_readfirstlane_b32 s51, v7")
o("s_cmp_ge_u32 s51, 4")
o("s_cbranch_scc1 A_s1")
o("ds_read_b32 v44, v4")
o("s_waitcnt lgkmcnt(0)")
o("v_mov_b32 v45, v44")
wave_scan(45)
o("v_readlane_b32 s52, v45, 63")
o("v_mov_b32 v7, s51")
o("v_lshlrev_b32 v7, 2, v7")
o("v_mov_b32 v46, s52")
o("ds_write_b32 v7, v46 offset:1024")
lab("A_s1")
o("s_waitcnt lgkmcnt(0)")
o("s_barrier")
o("s_cmp_ge_u32 s51, 4")
o("s_cbranch_scc1 A_s2")
o("ds_read_b128 v[48:51], v5 offset:1024")
o("s_waitcnt lgkmcnt(0)")
o("v_sub_u32 v45, v45, v44")
for w in range(3):
    o(f"s_cmp_gt_u32 s51, {w}")
    o(f"s_cselect_b32 s52, -1, 0")
    o(f"v_and_b32 v7, s52, v{48+w}")
    o("v_add_u32 v45, v45, v7")
o("ds_write_b32 v4, v45")
o("s_lshl_b32 s53, s2, 2")
o("v_lshlrev_b32 v7, 10, v0")
o("v_add_u32 v7, s53, v7")
o("buffer_store_dword v45, v7, s[32:35], 0 offen")
o("v_add_u32 v7, 1024, v7")
o("v_add_u32 v46, v45, v44")
o("v_cmp_eq_u32 vcc, 255, v0")
o("s_and_saveexec_b64 s[46:47], vcc")
o("s_cbranch_execz A_s3")
o("buffer_store_dword v46, v7, s[32:35], 0 offen")
lab("A_s3")
o("s_mov_b64 exec, -1")
lab("A_s2")
o("s_waitcnt lgkmcnt(0)")
o("s_barrier")
for k in range(4):
    if k == 3:
        o("s_mov_b64 exec, s[48:49]")
        o("s_cbranch_execz A_w3")
    o(f"v_lshlrev_b32 v7, 2, v{32+k}")
    o("ds_read_b32 v44, v7")
    o(f"v_and_b32 v{12+k}, 0xffff, v{12+k}")
    o(f"v_lshl_or_b32 v{12+k}, v{36+k}, 16, v{12+k}")
    o("s_waitcnt lgkmcnt(0)")
    o(f"v_add3_u32 v44, v44, v{40+k}, s3")
    o("v_lshlrev_b32 v45, 2, v44")
    o("v_lshlrev_b32 v46, 4, v44")
    o(f"buffer_store_dword v{12+k}, v45, s[36:39], 0 offen")
    o(f"buffer_store_dwordx4 v[{16+4*k}:{19+4*k}], v46, s[40:43], 0 offen")
lab("A_w3")
lab("A_end")
o("s_endpgm")

NST, CUR, CTR, WTOT, WFR, STG, LSRC, LF = 0, 2048, 4096, 4112, 8192, 16384, 32768, 49152
CG, WR, ACC, BP, AH, AL, F = 16, 32, 48, 64, 68, 72, 76
T0 = 84
BUF = 104
VI8, VG2, VSH = 1, 2, 3
SX, SO, SNB = 16, 20, 60
ST = 64
L.append(".globl main_kernel\n.p2align 8\n.type main_kernel,@function")
lab("main_kernel")
o("s_cmp_ge_u32 s2, 256")
o("s_cbranch_scc1 B_end")
o("s_load_dwordx2 s[4:5], s[0:1], 0")
o("s_load_dwordx2 s[6:7], s[0:1], 40")
o("s_load_dwordx2 s[8:9], s[0:1], 48")
o("s_load_dwordx2 s[10:11], s[0:1], 56")
o("s_load_dwordx2 s[12:13], s[0:1], 64")
o("s_load_dwordx2 s[14:15], s[0:1], 80")
o("s_waitcnt lgkmcnt(0)")
srd(SX, 4, 25600000); srd(SO, 12, 25600000)
srd(24, 6, 128); srd(28, 8, 512); srd(32, 10, 8192)
srd(36, 14, TAB_SZ); srd(40, 14, RS_SZ, RS_OFF); srd(44, 14, RF_SZ, RF_OFF); srd(84, 14, 256*200704, 0x2000000)
o("s_mul_i32 s3, s2, 196")
o("s_sub_u32 s60, 50000, s3")
o("s_min_u32 s60, s60, 196")
o("v_and_b32 v4, 63, v0")
o("v_and_b32 v5, 15, v4")
o("v_lshrrev_b32 v6, 4, v4")
o("v_lshrrev_b32 v7, 6, v0")
o("s_nop 0")
o("v_readfirstlane_b32 s61, v7")
o(f"v_lshlrev_b32 v{VI8}, 3, v5")
o(f"v_lshlrev_b32 v{VG2}, 1, v6")
o("v_lshrrev_b32 v8, 2, v5")
o("v_and_b32 v9, 3, v5")
o("v_and_b32 v10, 1, v9")
o("v_xor_b32 v10, 1, v10")
o(f"v_lshlrev_b32 v{VSH}, 4, v10")
o("v_cmp_lt_u32 s[62:63], 1, v9")
o("v_lshlrev_b32 v10, 1, v8")
for u in range(4):
    for v in range(4):
        o(f"buffer_load_ushort v{CG+4*u+v}, v10, s[24:27], 0 offen offset:{(u*16+v*4)*2}")
for r in range(4):
    o(f"buffer_load_dwordx2 v[{T0+2*r}:{T0+2*r+1}], v{VI8}, s[28:31], 0 offen offset:{128*r}")
o("s_lshr_b32 s50, s61, 1")
o("s_and_b32 s51, s61, 1")
o("s_lshl_b32 s50, s50, 3")
o("s_lshl_b32 s51, s51, 12")
o("s_add_u32 s50, s50, s51")
o("v_lshlrev_b32 v10, 5, v8")
o("v_lshl_add_u32 v10, v9, 1, v10")
o("v_lshl_add_u32 v10, v6, 10, v10")
for r in range(4):
    o(f"buffer_load_ushort v{T0+8+r}, v10, s[32:35], s50 offen offset:{256*r}")
    o(f"buffer_load_ushort v{T0+12+r}, v10, s[32:35], s50 offen offset:{256*r+128}")
o("v_lshrrev_b32 v11, 1, v0")
o("v_and_b32 v12, 1, v0")
o("s_lshl_b32 s52, s2, 10")
o("v_lshl_add_u32 v13, v11, 2, s52")
o("buffer_load_dword v14, v13, s[36:39], 0 offen")
o("buffer_load_dword v15, v13, s[36:39], 0 offen offset:1024")
o("v_mov_b32 v10, 0")
o("v_lshlrev_b32 v13, 2, v0")
o("v_cmp_gt_u32 vcc, 264, v0")
o("s_and_saveexec_b64 s[54:55], vcc")
o("s_cbranch_execz B_z")
o(f"ds_write_b32 v13, v10 offset:{NST}")
lab("B_z")
o("s_mov_b64 exec, -1")
o(f"ds_write_b32 v10, v10 offset:{CTR}")
o("s_waitcnt vmcnt(0)")
for k in range(16):
    o(f"v_lshlrev_b32 v{CG+k}, 16, v{CG+k}")
for r in range(4):
    o(f"v_lshlrev_b32 v{WR+4*r}, 16, v{T0+2*r}")
    o(f"v_and_b32 v{WR+4*r+1}, 0xffff0000, v{T0+2*r}")
    o(f"v_lshlrev_b32 v{WR+4*r+2}, 16, v{T0+2*r+1}")
    o(f"v_and_b32 v{WR+4*r+3}, 0xffff0000, v{T0+2*r+1}")
for r in range(4): o(f"v_lshl_or_b32 v{T0+8+r}, v{T0+12+r}, 16, v{T0+8+r}")
o("v_lshlrev_b32 v10, 4, v0")
o(f"ds_write_b128 v10, v[{T0+8}:{T0+11}] offset:{WFR}")
o("v_mul_u32_u24 v10, 3125, v11")
o("v_add_u32 v15, v15, v10")
o("v_add3_u32 v14, v14, v10, v12")
o("s_waitcnt lgkmcnt(0)")
o("s_barrier")
o("v_mov_b32 v102, 1")
o("s_cmp_ge_u32 s61, 4")
o("s_cbranch_scc1 R_s1")
o("v_lshl_add_u32 v13, v0, 2, s52")
o("buffer_load_dword v10, v13, s[36:39], 0 offen")
o("buffer_load_dword v11, v13, s[36:39], 0 offen offset:1024")
o("s_waitcnt vmcnt(0)")
o("v_sub_u32 v10, v11, v10")
o("v_mov_b32 v11, v10")
wave_scan(11)
o("v_readlane_b32 s53, v11, 63")
o("s_lshl_b32 s54, s61, 2")
o("v_mov_b32 v12, s54")
o("v_mov_b32 v9, s53")
o(f"ds_write_b32 v12, v9 offset:{WTOT}")
lab("R_s1")
o("s_waitcnt lgkmcnt(0)")
o("s_barrier")
o("v_mov_b32 v12, 0")
o(f"ds_read_b128 v[{T0}:{T0+3}], v12 offset:{WTOT}")
o("s_waitcnt lgkmcnt(0)")
o(f"v_add3_u32 v12, v{T0}, v{T0+1}, v{T0+2}")
o(f"v_add_u32 v12, v12, v{T0+3}")
o("s_nop 0")
o("v_readfirstlane_b32 s88, v12")
o("s_cmp_ge_u32 s61, 4")
o("s_cbranch_scc1 R_s2")
o("v_sub_u32 v11, v11, v10")
for w in range(3):
    o(f"s_cmp_gt_u32 s61, {w}")
    o("s_cselect_b32 s53, -1, 0")
    o(f"v_and_b32 v12, s53, v{T0+w}")
    o("v_add_u32 v11, v11, v12")
o("v_lshlrev_b32 v13, 2, v0")
o("ds_write_b32 v13, v11 offset:5120")
lab("R_s2")
o("s_waitcnt lgkmcnt(0)")
o("s_barrier")
o("v_lshrrev_b32 v13, 1, v0")
o("v_lshlrev_b32 v13, 2, v13")
o("ds_read_b32 v103, v13 offset:5120")
o("s_mov_b32 s53, 4423242")
o("s_waitcnt lgkmcnt(0)")
o("v_mul_hi_u32 v103, v103, s53")
o("s_mul_hi_u32 s89, s88, s53")
o("s_add_u32 s89, s89, 1")
o(f"s_cmp_le_u32 s88, {CAP}")
o("s_cselect_b32 s89, 1, s89")
o("s_cselect_b32 s53, 0, -1")
o("v_and_b32 v103, s53, v103")
o("s_mov_b32 s90, 0")
o("s_mul_i32 s91, s2, 200704")
lab("R_loop")
o("v_mov_b32 v10, 0")
o("v_lshlrev_b32 v13, 2, v0")
o("v_cmp_gt_u32 vcc, 264, v0")
o("s_and_saveexec_b64 s[54:55], vcc")
o("s_cbranch_execz R_z")
o(f"ds_write_b32 v13, v10 offset:{NST}")
lab("R_z")
o("s_mov_b64 exec, -1")
o(f"ds_write_b32 v10, v10 offset:{CTR}")
o("s_waitcnt lgkmcnt(0)")
o("s_barrier")
def pass_loop(second):
    a, e = U("pl"), U("pe")
    o("v_cmp_eq_u32 vcc, s90, v103")
    o("s_nop 1")
    o("v_cndmask_b32 v10, v15, v14, vcc")
    lab(a)
    o("v_cmp_lt_u32 vcc, v10, v15")
    o("s_and_b64 exec, exec, vcc")
    o(f"s_cbranch_execz {e}")
    o("v_lshlrev_b32 v13, 2, v10")
    o("buffer_load_dword v11, v13, s[40:43], 0 offen")
    if second:
        o("v_lshlrev_b32 v13, 4, v10")
        o(f"buffer_load_dwordx4 v[{T0}:{T0+3}], v13, s[44:47], 0 offen")
    o("s_waitcnt vmcnt(0)")
    o("v_lshrrev_b32 v12, 14, v11")
    o("v_and_b32 v12, 0x3fc, v12")
    if not second:
        o(f"ds_add_u32 v12, v102 offset:{NST}")
    else:
        o(f"ds_add_rtn_u32 v12, v12, v102 offset:{CUR}")
        o("v_and_b32 v11, 0xffff, v11")
        o("s_waitcnt lgkmcnt(0)")
        o(f"v_min_u32 v12, {CAP-1}, v12")
        o("v_lshlrev_b32 v13, 2, v12")
        o(f"ds_write_b32 v13, v11 offset:{LSRC}")
        o("v_lshlrev_b32 v13, 4, v12")
        o(f"ds_write_b128 v13, v[{T0}:{T0+3}] offset:{LF}")
    o("v_add_u32 v10, 2, v10")
    o(f"s_branch {a}")
    lab(e)
    o("s_mov_b64 exec, -1")
    o("s_waitcnt lgkmcnt(0)")
    o("s_barrier")
pass_loop(False)
o("s_cmp_ge_u32 s61, 4")
o("s_cbranch_scc1 B_s1")
o("v_lshlrev_b32 v13, 2, v0")
o(f"ds_read_b32 v10, v13 offset:{NST}")
o("s_waitcnt lgkmcnt(0)")
o("v_mov_b32 v11, v10")
wave_scan(11)
o("v_readlane_b32 s52, v11, 63")
o("s_lshl_b32 s53, s61, 2")
o("v_mov_b32 v12, s53")
o("v_mov_b32 v9, s52")
o(f"ds_write_b32 v12, v9 offset:{WTOT}")
lab("B_s1")
o("s_waitcnt lgkmcnt(0)")
o("s_barrier")
o("s_cmp_ge_u32 s61, 4")
o("s_cbranch_scc1 B_s2")
o("v_mov_b32 v12, 0")
o(f"ds_read_b128 v[{T0}:{T0+3}], v12 offset:{WTOT}")
o("s_waitcnt lgkmcnt(0)")
o("v_sub_u32 v11, v11, v10")
for w in range(3):
    o(f"s_cmp_gt_u32 s61, {w}")
    o("s_cselect_b32 s52, -1, 0")
    o(f"v_and_b32 v12, s52, v{T0+w}")
    o("v_add_u32 v11, v11, v12")
o(f"ds_write_b32 v13, v11 offset:{NST}")
o(f"ds_write_b32 v13, v11 offset:{CUR}")
lab("B_s2")
o("s_waitcnt lgkmcnt(0)")
o("s_barrier")
pass_loop(True)
o("s_mov_b32 s56, 0")
o("s_mov_b32 s57, 0")
o("s_mov_b32 s58, 0")
o("s_mov_b32 s59, 0")
o("s_mov_b32 s48, 0x05040100")
o("s_mov_b32 s49, 0x07060302")
o("s_lshl_b32 s79, s61, 11")
o(f"s_add_u32 s79, s79, {STG}")
for k in range(16): o(f"v_mov_b32 v{ACC+k}, 0")
o("v_mov_b32 v101, 0x80000000")
o("v_mov_b32 v100, -1")

def next_issue(bi):
    st = ST + 3*bi
    h, dn, go = U("nh"), U("nd"), U("ng")
    o("s_cmp_lt_u32 s56, s57")
    o(f"s_cbranch_scc1 {h}")
    o("s_mov_b64 exec, 1")
    o("v_mov_b32 v10, 0")
    o(f"ds_add_rtn_u32 v10, v10, v102 offset:{CTR}")
    o("s_waitcnt lgkmcnt(0)")
    o("v_readfirstlane_b32 s58, v10")
    o("s_mov_b64 exec, -1")
    o("s_cmp_ge_u32 s58, s60")
    o(f"s_cbranch_scc1 {dn}")
    o("s_lshl_b32 s52, s58, 2")
    o("v_mov_b32 v10, s52")
    o(f"ds_read2_b32 v[10:11], v10 offset0:0 offset1:1")
    L[-1] = f"    ds_read2_b32 v[10:11], v12 offset0:0 offset1:1"
    L.insert(len(L)-1, f"    v_add_u32 v12, {NST}, v10")
    o("s_waitcnt lgkmcnt(0)")
    o("v_readfirstlane_b32 s56, v10")
    o("v_readfirstlane_b32 s57, v11")
    o(f"s_branch {h}")
    lab(dn)
    o("s_mov_b32 s58, -1")
    o("s_mov_b32 s56, 0")
    o("s_mov_b32 s57, 0")
    lab(h)
    o(f"s_mov_b32 s{st}, s56")
    o(f"s_mov_b32 s{st+1}, s57")
    o(f"s_mov_b32 s{st+2}, s58")
    o("s_add_u32 s56, s56, 8")
    o(f"v_add_u32 v10, s{st}, v{VG2}")
    o("v_lshlrev_b32 v11, 2, v10")
    o(f"v_add_u32 v11, {LSRC}, v11")
    o(f"ds_read2_b32 v[12:13], v11 offset0:0 offset1:1")
    o("v_add_u32 v11, 1, v10")
    o(f"v_cmp_gt_u32 vcc, s{st+1}, v10")
    o(f"v_cmp_gt_u32 s[54:55], s{st+1}, v11")
    o("s_waitcnt lgkmcnt(0)")
    o(f"v_lshl_add_u32 v12, v12, 9, v{VI8}")
    o(f"v_lshl_add_u32 v13, v13, 9, v{VI8}")
    o("v_cndmask_b32 v12, v101, v12, vcc")
    o("v_cndmask_b32 v13, v101, v13, s[54:55]")
    b = BUF + 16*bi
    for u in range(4):
        o(f"buffer_load_dwordx2 v[{b+2*u}:{b+2*u+1}], v12, s[{SX}:{SX+3}], 0 offen offset:{128*u}")
    for u in range(4):
        o(f"buffer_load_dwordx2 v[{b+8+2*u}:{b+9+2*u}], v13, s[{SX}:{SX+3}], 0 offen offset:{128*u}")

def flush():
    o("v_lshlrev_b32 v10, 7, v5")
    o("v_lshl_add_u32 v10, v6, 4, v10")
    o("v_add_u32 v10, s79, v10")
    o(f"ds_read_b128 v[{T0}:{T0+3}], v10")
    o(f"ds_read_b128 v[{T0+4}:{T0+7}], v10 offset:64")
    o("v_lshlrev_b32 v11, 4, v4")
    for j in range(4):
        o(f"ds_read_b128 v[{BP}:{BP+3}], v11 offset:{WFR+2048*j}")
        o(f"ds_read_b128 v[{F}:{F+3}], v11 offset:{WFR+2048*j+1024}")
        o("s_waitcnt lgkmcnt(0)")
        o(f"v_mfma_f32_16x16x32_bf16 v[{AH}:{AH+3}], v[{BP}:{BP+3}], v[{T0}:{T0+3}], 0")
        o(f"v_mfma_f32_16x16x32_bf16 v[{AH}:{AH+3}], v[{F}:{F+3}], v[{T0+4}:{T0+7}], v[{AH}:{AH+3}]")
        o("s_nop 9")
        o(f"v_cvt_pk_bf16_f32 v{T0+8+2*j}, v{AH}, v{AH+1}")
        o(f"v_cvt_pk_bf16_f32 v{T0+9+2*j}, v{AH+2}, v{AH+3}")
    o("v_lshrrev_b32 v10, 2, v5")
    o("v_lshlrev_b32 v10, 2, v10")
    o("ds_bpermute_b32 v10, v10, v100")
    o("v_and_b32 v11, 3, v5")
    o("v_lshlrev_b32 v11, 7, v11")
    o("v_lshl_add_u32 v11, v6, 5, v11")
    o("s_waitcnt lgkmcnt(0)")
    o("v_cmp_gt_u32 vcc, 0x10000, v10")
    o("v_lshl_add_u32 v10, v10, 9, v11")
    o("s_nop 0")
    o("v_cndmask_b32 v10, v101, v10, vcc")
    o(f"buffer_store_dwordx4 v[{T0+8}:{T0+11}], v10, s[{SO}:{SO+3}], 0 offen")
    o(f"buffer_store_dwordx4 v[{T0+12}:{T0+15}], v10, s[{SO}:{SO+3}], 0 offen offset:16")
    o("s_nop 1")
    o("v_mov_b32 v100, -1")
    o("s_mov_b32 s59, 0")

def compute(bi):
    st = ST + 3*bi
    b = BUF + 16*bi
    o(f"s_cmp_eq_u32 s{st+2}, -1")
    o("s_cbranch_scc1 B_done")
    o(f"v_add_u32 v10, s{st}, v{VG2}")
    o("v_lshlrev_b32 v11, 4, v10")
    o(f"ds_read_b128 v[{F}:{F+3}], v11 offset:{LF}")
    o(f"ds_read_b128 v[{F+4}:{F+7}], v11 offset:{LF+16}")
    o("v_add_u32 v11, 1, v10")
    o(f"v_cmp_gt_u32 vcc, s{st+1}, v10")
    o(f"v_cmp_gt_u32 s[54:55], s{st+1}, v11")
    o("s_waitcnt lgkmcnt(0)")
    for e in range(2):
        f = F + 4*e
        t = T0
        o(f"v_lshlrev_b32 v{t}, 16, v{f}")
        o(f"v_and_b32 v{t+1}, 0xffff0000, v{f}")
        o(f"v_lshlrev_b32 v{t+2}, 16, v{f+1}")
        o(f"v_and_b32 v{t+3}, 0xffff0000, v{f+1}")
        o(f"v_cndmask_b32 v{t+4}, v{f+2}, v{f+3}, s[62:63]")
        o(f"v_lshlrev_b32 v{t+4}, v{VSH}, v{t+4}")
        o(f"v_and_b32 v{t+4}, 0xffff0000, v{t+4}")
        o(f"v_cndmask_b32 v{t+4}, 0, v{t+4}, " + ("vcc" if e == 0 else "s[54:55]"))
        for u in range(4):
            c = t + 8 + 4*e + u
            o(f"v_mul_f32 v{c}, v{CG+4*u}, v{t}")
            for v in range(1, 4):
                o(f"v_fmac_f32 v{c}, v{CG+4*u+v}, v{t+v}")
            o(f"v_mul_f32 v{c}, v{c}, v{t+4}")
    for r in range(4):
        c0, c1 = T0+8+2*r, T0+9+2*r
        o(f"v_cvt_pk_bf16_f32 v{AH+r}, v{c0}, v{c1}")
        o(f"v_lshlrev_b32 v10, 16, v{AH+r}")
        o(f"v_and_b32 v11, 0xffff0000, v{AH+r}")
        o(f"v_sub_f32 v10, v{c0}, v10")
        o(f"v_sub_f32 v11, v{c1}, v11")
        o(f"v_cvt_pk_bf16_f32 v{AL+r}, v10, v11")
    o(f"s_waitcnt vmcnt({8*(D-1)})")
    for j in range(4):
        sel = "s48" if (j & 1) == 0 else "s49"
        for r in range(4):
            o(f"v_perm_b32 v{BP+r}, v{b+2*(2*r+1)+(j>>1)}, v{b+2*(2*r)+(j>>1)}, {sel}")
        o("s_nop 1")
        o(f"v_mfma_f32_16x16x32_bf16 v[{ACC+4*j}:{ACC+4*j+3}], v[{AH}:{AH+3}], v[{BP}:{BP+3}], v[{ACC+4*j}:{ACC+4*j+3}]")
        o(f"v_mfma_f32_16x16x32_bf16 v[{ACC+4*j}:{ACC+4*j+3}], v[{AL}:{AL+3}], v[{BP}:{BP+3}], v[{ACC+4*j}:{ACC+4*j+3}]")
    nl = U("nl")
    o(f"s_add_u32 s52, s{st}, 8")
    o(f"s_cmp_lt_u32 s52, s{st+1}")
    o(f"s_cbranch_scc1 {nl}")
    o("s_nop 9")
    for j in range(4):
        o(f"v_mul_f32 v{T0+j}, v{WR+j}, v{ACC+4*j}")
        for r in range(1, 4):
            o(f"v_fmac_f32 v{T0+j}, v{WR+4*r+j}, v{ACC+4*j+r}")
    f1, f2 = U("f1"), U("f2")
    o("s_cmp_eq_u32 s89, 1")
    o(f"s_cbranch_scc1 {f2}")
    o(f"s_lshl_b32 s52, s{st+2}, 10")
    o("s_add_u32 s52, s52, s91")
    o("v_lshlrev_b32 v10, 8, v6")
    o("v_lshl_add_u32 v10, v5, 4, v10")
    o("v_add_u32 v10, s52, v10")
    o("s_cmp_eq_u32 s90, 0")
    o(f"s_cbranch_scc1 {f1}")
    o(f"buffer_load_dwordx4 v[{T0+4}:{T0+7}], v10, s[84:87], 0 offen sc1")
    o("s_waitcnt vmcnt(0)")
    for j in range(4): o(f"v_add_f32 v{T0+j}, v{T0+j}, v{T0+4+j}")
    lab(f1)
    o("s_add_u32 s52, s90, 1")
    o("s_cmp_eq_u32 s52, s89")
    o(f"s_cbranch_scc1 {f2}")
    o(f"buffer_store_dwordx4 v[{T0}:{T0+3}], v10, s[84:87], 0 offen")
    for k in range(16): o(f"v_mov_b32 v{ACC+k}, 0")
    o(f"s_branch {nl}")
    lab(f2)
    o(f"v_cvt_pk_bf16_f32 v{T0+4}, v{T0}, v{T0+1}")
    o(f"v_cvt_pk_bf16_f32 v{T0+5}, v{T0+2}, v{T0+3}")
    o("s_lshl_b32 s52, s59, 9")
    o("s_add_u32 s52, s52, s79")
    o("v_lshlrev_b32 v10, 7, v6")
    o(f"v_add_u32 v10, v10, v{VI8}")
    o("v_add_u32 v10, s52, v10")
    o(f"ds_write_b64 v10, v[{T0+4}:{T0+5}]")
    for k in range(16): o(f"v_mov_b32 v{ACC+k}, 0")
    o(f"s_add_u32 s52, s{st+2}, s3")
    o("s_mov_b32 m0, s59")
    o("s_nop 0")
    o("v_writelane_b32 v100, s52, m0")
    o("s_add_u32 s59, s59, 1")
    o("s_cmp_lt_u32 s59, 4")
    o(f"s_cbranch_scc1 {nl}")
    flush()
    lab(nl)

for bi in range(D-1): next_issue(bi)
lab("B_loop")
for s in range(D):
    next_issue((s + D - 1) % D)
    compute(s)
o("s_branch B_loop")
lab("B_done")
o("s_cmp_eq_u32 s59, 0")
o("s_cbranch_scc1 B_nf")
flush()
lab("B_nf")
o("s_add_u32 s90, s90, 1")
o("s_cmp_ge_u32 s90, s89")
o("s_cbranch_scc1 B_end")
o("s_waitcnt vmcnt(0)")
o("s_barrier")
o("s_branch R_loop")
lab("B_end")
o("s_endpgm")

out += L
def desc(name, vg):
    return f""".amdhsa_kernel {name}
  .amdhsa_next_free_vgpr {vg}
  .amdhsa_next_free_sgpr 102
  .amdhsa_accum_offset {vg}
  .amdhsa_group_segment_fixed_size 0
  .amdhsa_kernarg_size 88
  .amdhsa_user_sgpr_count 2
  .amdhsa_user_sgpr_kernarg_segment_ptr 1
  .amdhsa_system_sgpr_workgroup_id_x 1
.end_amdhsa_kernel"""
out.append('.section .rodata,"a"\n.p2align 6')
out.append(desc("sort_kernel", 64))
out.append(".p2align 6")
out.append(desc("main_kernel", 256))
open('gather_scatter__tensor_product_equiv_mace__graph.s', 'w').write("\n".join(out) + "\n")
```

```python
D = 2
CAP = 4096
L = []
def o(s): L.append("    " + s)
def lab(s): L.append(s + ":")
uid = [0]
def U(p):
    uid[0] += 1
    return f"{p}_{uid[0]}"

def srd(d, b, size, off=0):
    if off:
        o(f"s_add_u32 s{d}, s{b}, {off}")
        o(f"s_addc_u32 s{d+1}, s{b+1}, 0")
    else:
        o(f"s_mov_b32 s{d}, s{b}")
        o(f"s_mov_b32 s{d+1}, s{b+1}")
    o(f"s_mov_b32 s{d+2}, {size}")
    o(f"s_mov_b32 s{d+3}, 0x00020000")

def wave_scan(v):
    o("v_and_b32 v60, 63, v0")
    for off in [1,2,4,8,16,32]:
        o(f"v_subrev_u32 v61, {off}, v60")
        o("v_lshlrev_b32 v61, 2, v61")
        o(f"ds_bpermute_b32 v61, v61, v{v}")
        o(f"v_cmp_le_u32 vcc, {off}, v60")
        o("s_waitcnt lgkmcnt(0)")
        o("v_cndmask_b32 v61, 0, v61, vcc")
        o(f"v_add_u32 v{v}, v{v}, v61")
    o("s_nop 1")

TAB_SZ = 257*256*4
RS_OFF, RS_SZ = 0x100000, 3200000
RF_OFF, RF_SZ = 0x500000, 12800000

hdr = open('gather_scatter__tensor_product_equiv_mace__graph.s.ref').read().split('\n')
out = [l for l in hdr if l.startswith(';') and '@launch' not in l]
out.append("; @launch kernel=sort_kernel grid=(256,1,1) block=(1024,1,1) lds=2048")
out.append("; @launch kernel=main_kernel grid=(256,1,1) block=(512,1,1) lds=114688")
out.append('.amdgcn_target "amdgcn-amd-amdhsa--gfx950"')
out.append(".text")

L.append(".globl sort_kernel\n.p2align 8\n.type sort_kernel,@function")
lab("sort_kernel")
o("s_cmp_ge_u32 s2, 256")
o("s_cbranch_scc1 A_end")
o("s_load_dwordx2 s[4:5], s[0:1], 8")
o("s_load_dwordx2 s[6:7], s[0:1], 16")
o("s_load_dwordx2 s[8:9], s[0:1], 24")
o("s_load_dwordx2 s[10:11], s[0:1], 32")
o("s_load_dwordx2 s[12:13], s[0:1], 80")
o("s_waitcnt lgkmcnt(0)")
srd(16, 4, 3200000); srd(20, 6, 3200000); srd(24, 8, 6400000); srd(28, 10, 6400000)
srd(32, 12, TAB_SZ); srd(36, 12, RS_SZ, RS_OFF); srd(40, 12, RF_SZ, RF_OFF)
o("s_mul_i32 s3, s2, 3125")
o("v_add_u32 v1, s3, v0")
o("v_lshlrev_b32 v2, 2, v1")
o("v_lshlrev_b32 v3, 3, v1")
o("v_lshlrev_b32 v4, 2, v0")
o("v_mov_b32 v5, 0")
o("v_mov_b32 v6, 1")
o("s_mov_b32 s50, 21913099")
o("v_cmp_gt_u32 vcc, 256, v0")
o("s_and_saveexec_b64 s[46:47], vcc")
o("s_cbranch_execz A_z")
o("ds_write_b32 v4, v5")
lab("A_z")
o("s_mov_b64 exec, s[46:47]")
o("v_cmp_gt_u32 s[48:49], 53, v0")
for k in range(4):
    if k == 3:
        o("s_mov_b64 exec, s[48:49]")
        o("s_cbranch_execz A_l3")
    o(f"s_mov_b32 s44, {4096*k}")
    o(f"s_mov_b32 s45, {8192*k}")
    o(f"buffer_load_dword v{8+k}, v2, s[20:23], s44 offen")
    o(f"buffer_load_dword v{12+k}, v2, s[16:19], s44 offen")
    o(f"buffer_load_dwordx2 v[{16+4*k}:{17+4*k}], v3, s[24:27], s45 offen")
    o(f"buffer_load_dwordx2 v[{18+4*k}:{19+4*k}], v3, s[28:31], s45 offen")
lab("A_l3")
o("s_mov_b64 exec, -1")
o("s_waitcnt lgkmcnt(0)")
o("s_barrier")
for k in range(4):
    if k == 3:
        o("s_mov_b64 exec, s[48:49]")
        o("s_cbranch_execz A_h3")
    o("s_waitcnt vmcnt(0)")
    o(f"v_mul_hi_u32 v{32+k}, v{8+k}, s50")
    o(f"v_min_u32 v{32+k}, 255, v{32+k}")
    o(f"v_mul_u32_u24 v7, 196, v{32+k}")
    o(f"v_sub_u32 v{36+k}, v{8+k}, v7")
    o(f"v_min_u32 v{36+k}, 195, v{36+k}")
    o(f"v_lshlrev_b32 v7, 2, v{32+k}")
    o(f"ds_add_rtn_u32 v{40+k}, v7, v6")
lab("A_h3")
o("s_mov_b64 exec, -1")
o("s_waitcnt lgkmcnt(0)")
o("s_barrier")
o("v_lshrrev_b32 v7, 6, v0")
o("s_nop 0")
o("v_readfirstlane_b32 s51, v7")
o("s_cmp_ge_u32 s51, 4")
o("s_cbranch_scc1 A_s1")
o("ds_read_b32 v44, v4")
o("s_waitcnt lgkmcnt(0)")
o("v_mov_b32 v45, v44")
wave_scan(45)
o("v_readlane_b32 s52, v45, 63")
o("v_mov_b32 v7, s51")
o("v_lshlrev_b32 v7, 2, v7")
o("v_mov_b32 v46, s52")
o("ds_write_b32 v7, v46 offset:1024")
lab("A_s1")
o("s_waitcnt lgkmcnt(0)")
o("s_barrier")
o("s_cmp_ge_u32 s51, 4")
o("s_cbranch_scc1 A_s2")
o("ds_read_b128 v[48:51], v5 offset:1024")
o("s_waitcnt lgkmcnt(0)")
o("v_sub_u32 v45, v45, v44")
for w in range(3):
    o(f"s_cmp_gt_u32 s51, {w}")
    o(f"s_cselect_b32 s52, -1, 0")
    o(f"v_and_b32 v7, s52, v{48+w}")
    o("v_add_u32 v45, v45, v7")
o("ds_write_b32 v4, v45")
o("s_lshl_b32 s53, s2, 2")
o("v_lshlrev_b32 v7, 10, v0")
o("v_add_u32 v7, s53, v7")
o("buffer_store_dword v45, v7, s[32:35], 0 offen")
o("v_add_u32 v7, 1024, v7")
o("v_add_u32 v46, v45, v44")
o("v_cmp_eq_u32 vcc, 255, v0")
o("s_and_saveexec_b64 s[46:47], vcc")
o("s_cbranch_execz A_s3")
o("buffer_store_dword v46, v7, s[32:35], 0 offen")
lab("A_s3")
o("s_mov_b64 exec, -1")
lab("A_s2")
o("s_waitcnt lgkmcnt(0)")
o("s_barrier")
for k in range(4):
    if k == 3:
        o("s_mov_b64 exec, s[48:49]")
        o("s_cbranch_execz A_w3")
    o(f"v_lshlrev_b32 v7, 2, v{32+k}")
    o("ds_read_b32 v44, v7")
    o(f"v_and_b32 v{12+k}, 0xffff, v{12+k}")
    o(f"v_lshl_or_b32 v{12+k}, v{36+k}, 16, v{12+k}")
    o("s_waitcnt lgkmcnt(0)")
    o(f"v_add3_u32 v44, v44, v{40+k}, s3")
    o("v_lshlrev_b32 v45, 2, v44")
    o("v_lshlrev_b32 v46, 4, v44")
    o(f"buffer_store_dword v{12+k}, v45, s[36:39], 0 offen")
    o(f"buffer_store_dwordx4 v[{16+4*k}:{19+4*k}], v46, s[40:43], 0 offen")
lab("A_w3")
lab("A_end")
o("s_endpgm")

NST, CUR, CTR, WTOT, WFR, STG, LSRC, LF = 0, 2048, 4096, 4112, 8192, 16384, 32768, 49152
CG, WR, ACC, BP, AH, AL, F = 16, 32, 48, 64, 68, 72, 76
T0 = 84
BUF = 104
VI8, VG2, VSH = 1, 2, 3
SX, SO, SNB = 16, 20, 60
ST = 64
L.append(".globl main_kernel\n.p2align 8\n.type main_kernel,@function")
lab("main_kernel")
o("s_cmp_ge_u32 s2, 256")
o("s_cbranch_scc1 B_end")
o("s_load_dwordx2 s[4:5], s[0:1], 0")
o("s_load_dwordx2 s[6:7], s[0:1], 40")
o("s_load_dwordx2 s[8:9], s[0:1], 48")
o("s_load_dwordx2 s[10:11], s[0:1], 56")
o("s_load_dwordx2 s[12:13], s[0:1], 64")
o("s_load_dwordx2 s[14:15], s[0:1], 80")
o("s_waitcnt lgkmcnt(0)")
srd(SX, 4, 25600000); srd(SO, 12, 25600000)
srd(24, 6, 128); srd(28, 8, 512); srd(32, 10, 8192)
srd(36, 14, TAB_SZ); srd(40, 14, RS_SZ, RS_OFF); srd(44, 14, RF_SZ, RF_OFF); srd(84, 14, 256*200704, 0x2000000)
o("s_mul_i32 s3, s2, 196")
o("s_sub_u32 s60, 50000, s3")
o("s_min_u32 s60, s60, 196")
o("v_and_b32 v4, 63, v0")
o("v_and_b32 v5, 15, v4")
o("v_lshrrev_b32 v6, 4, v4")
o("v_lshrrev_b32 v7, 6, v0")
o("s_nop 0")
o("v_readfirstlane_b32 s61, v7")
o(f"v_lshlrev_b32 v{VI8}, 3, v5")
o(f"v_lshlrev_b32 v{VG2}, 1, v6")
o("v_lshrrev_b32 v8, 2, v5")
o("v_and_b32 v9, 3, v5")
o("v_and_b32 v10, 1, v9")
o("v_xor_b32 v10, 1, v10")
o(f"v_lshlrev_b32 v{VSH}, 4, v10")
o("v_cmp_lt_u32 s[62:63], 1, v9")
o("v_lshlrev_b32 v10, 1, v8")
for u in range(4):
    for v in range(4):
        o(f"buffer_load_ushort v{CG+4*u+v}, v10, s[24:27], 0 offen offset:{(u*16+v*4)*2}")
for r in range(4):
    o(f"buffer_load_dwordx2 v[{T0+2*r}:{T0+2*r+1}], v{VI8}, s[28:31], 0 offen offset:{128*r}")
o("s_lshr_b32 s50, s61, 1")
o("s_and_b32 s51, s61, 1")
o("s_lshl_b32 s50, s50, 3")
o("s_lshl_b32 s51, s51, 12")
o("s_add_u32 s50, s50, s51")
o("v_lshlrev_b32 v10, 5, v8")
o("v_lshl_add_u32 v10, v9, 1, v10")
o("v_lshl_add_u32 v10, v6, 10, v10")
for r in range(4):
    o(f"buffer_load_ushort v{T0+8+r}, v10, s[32:35], s50 offen offset:{256*r}")
    o(f"buffer_load_ushort v{T0+12+r}, v10, s[32:35], s50 offen offset:{256*r+128}")
o("v_lshrrev_b32 v11, 1, v0")
o("v_and_b32 v12, 1, v0")
o("s_lshl_b32 s52, s2, 10")
o("v_lshl_add_u32 v13, v11, 2, s52")
o("buffer_load_dword v14, v13, s[36:39], 0 offen")
o("buffer_load_dword v15, v13, s[36:39], 0 offen offset:1024")
o("v_mov_b32 v10, 0")
o("v_lshlrev_b32 v13, 2, v0")
o("v_cmp_gt_u32 vcc, 264, v0")
o("s_and_saveexec_b64 s[54:55], vcc")
o("s_cbranch_execz B_z")
o(f"ds_write_b32 v13, v10 offset:{NST}")
lab("B_z")
o("s_mov_b64 exec, -1")
o(f"ds_write_b32 v10, v10 offset:{CTR}")
o("s_waitcnt vmcnt(0)")
for k in range(16):
    o(f"v_lshlrev_b32 v{CG+k}, 16, v{CG+k}")
for r in range(4):
    o(f"v_lshlrev_b32 v{WR+4*r}, 16, v{T0+2*r}")
    o(f"v_and_b32 v{WR+4*r+1}, 0xffff0000, v{T0+2*r}")
    o(f"v_lshlrev_b32 v{WR+4*r+2}, 16, v{T0+2*r+1}")
    o(f"v_and_b32 v{WR+4*r+3}, 0xffff0000, v{T0+2*r+1}")
for r in range(4): o(f"v_lshl_or_b32 v{T0+8+r}, v{T0+12+r}, 16, v{T0+8+r}")
o("v_lshlrev_b32 v10, 4, v0")
o(f"ds_write_b128 v10, v[{T0+8}:{T0+11}] offset:{WFR}")
o("v_mul_u32_u24 v10, 3125, v11")
o("v_add_u32 v15, v15, v10")
o("v_add3_u32 v14, v14, v10, v12")
o("s_waitcnt lgkmcnt(0)")
o("s_barrier")
o("v_mov_b32 v102, 1")
o("s_cmp_ge_u32 s61, 4")
o("s_cbranch_scc1 R_s1")
o("v_lshl_add_u32 v13, v0, 2, s52")
o("buffer_load_dword v10, v13, s[36:39], 0 offen")
o("buffer_load_dword v11, v13, s[36:39], 0 offen offset:1024")
o("s_waitcnt vmcnt(0)")
o("v_sub_u32 v10, v11, v10")
o("v_mov_b32 v11, v10")
wave_scan(11)
o("v_readlane_b32 s53, v11, 63")
o("s_lshl_b32 s54, s61, 2")
o("v_mov_b32 v12, s54")
o("v_mov_b32 v9, s53")
o(f"ds_write_b32 v12, v9 offset:{WTOT}")
lab("R_s1")
o("s_waitcnt lgkmcnt(0)")
o("s_barrier")
o("v_mov_b32 v12, 0")
o(f"ds_read_b128 v[{T0}:{T0+3}], v12 offset:{WTOT}")
o("s_waitcnt lgkmcnt(0)")
o(f"v_add3_u32 v12, v{T0}, v{T0+1}, v{T0+2}")
o(f"v_add_u32 v12, v12, v{T0+3}")
o("s_nop 0")
o("v_readfirstlane_b32 s88, v12")
o("s_cmp_ge_u32 s61, 4")
o("s_cbranch_scc1 R_s2")
o("v_sub_u32 v11, v11, v10")
for w in range(3):
    o(f"s_cmp_gt_u32 s61, {w}")
    o("s_cselect_b32 s53, -1, 0")
    o(f"v_and_b32 v12, s53, v{T0+w}")
    o("v_add_u32 v11, v11, v12")
o("v_lshlrev_b32 v13, 2, v0")
o("ds_write_b32 v13, v11 offset:5120")
lab("R_s2")
o("s_waitcnt lgkmcnt(0)")
o("s_barrier")
o("v_lshrrev_b32 v13, 1, v0")
o("v_lshlrev_b32 v13, 2, v13")
o("ds_read_b32 v103, v13 offset:5120")
o("s_mov_b32 s53, 4423242")
o("s_waitcnt lgkmcnt(0)")
o("v_mul_hi_u32 v103, v103, s53")
o("s_mul_hi_u32 s89, s88, s53")
o("s_add_u32 s89, s89, 1")
o(f"s_cmp_le_u32 s88, {CAP}")
o("s_cselect_b32 s89, 1, s89")
o("s_cselect_b32 s53, 0, -1")
o("v_and_b32 v103, s53, v103")
o("s_mov_b32 s90, 0")
o("s_mul_i32 s91, s2, 200704")
lab("R_loop")
o("v_mov_b32 v10, 0")
o("v_lshlrev_b32 v13, 2, v0")
o("v_cmp_gt_u32 vcc, 264, v0")
o("s_and_saveexec_b64 s[54:55], vcc")
o("s_cbranch_execz R_z")
o(f"ds_write_b32 v13, v10 offset:{NST}")
lab("R_z")
o("s_mov_b64 exec, -1")
o(f"ds_write_b32 v10, v10 offset:{CTR}")
o("s_waitcnt lgkmcnt(0)")
o("s_barrier")
def pass_loop(second):
    a, e = U("pl"), U("pe")
    o("v_cmp_eq_u32 vcc, s90, v103")
    o("s_nop 1")
    o("v_cndmask_b32 v10, v15, v14, vcc")
    lab(a)
    o("v_cmp_lt_u32 vcc, v10, v15")
    o("s_and_b64 exec, exec, vcc")
    o(f"s_cbranch_execz {e}")
    o("v_lshlrev_b32 v13, 2, v10")
    o("buffer_load_dword v11, v13, s[40:43], 0 offen")
    if second:
        o("v_lshlrev_b32 v13, 4, v10")
        o(f"buffer_load_dwordx4 v[{T0}:{T0+3}], v13, s[44:47], 0 offen")
    o("s_waitcnt vmcnt(0)")
    o("v_lshrrev_b32 v12, 14, v11")
    o("v_and_b32 v12, 0x3fc, v12")
    if not second:
        o(f"ds_add_u32 v12, v102 offset:{NST}")
    else:
        o(f"ds_add_rtn_u32 v12, v12, v102 offset:{CUR}")
        o("v_and_b32 v11, 0xffff, v11")
        o("s_waitcnt lgkmcnt(0)")
        o(f"v_min_u32 v12, {CAP-1}, v12")
        o("v_lshlrev_b32 v13, 2, v12")
        o(f"ds_write_b32 v13, v11 offset:{LSRC}")
        o("v_lshlrev_b32 v13, 4, v12")
        o(f"ds_write_b128 v13, v[{T0}:{T0+3}] offset:{LF}")
    o("v_add_u32 v10, 2, v10")
    o(f"s_branch {a}")
    lab(e)
    o("s_mov_b64 exec, -1")
    o("s_waitcnt lgkmcnt(0)")
    o("s_barrier")
pass_loop(False)
o("s_cmp_ge_u32 s61, 4")
o("s_cbranch_scc1 B_s1")
o("v_lshlrev_b32 v13, 2, v0")
o(f"ds_read_b32 v10, v13 offset:{NST}")
o("s_waitcnt lgkmcnt(0)")
o("v_mov_b32 v11, v10")
wave_scan(11)
o("v_readlane_b32 s52, v11, 63")
o("s_lshl_b32 s53, s61, 2")
o("v_mov_b32 v12, s53")
o("v_mov_b32 v9, s52")
o(f"ds_write_b32 v12, v9 offset:{WTOT}")
lab("B_s1")
o("s_waitcnt lgkmcnt(0)")
o("s_barrier")
o("s_cmp_ge_u32 s61, 4")
o("s_cbranch_scc1 B_s2")
o("v_mov_b32 v12, 0")
o(f"ds_read_b128 v[{T0}:{T0+3}], v12 offset:{WTOT}")
o("s_waitcnt lgkmcnt(0)")
o("v_sub_u32 v11, v11, v10")
for w in range(3):
    o(f"s_cmp_gt_u32 s61, {w}")
    o("s_cselect_b32 s52, -1, 0")
    o(f"v_and_b32 v12, s52, v{T0+w}")
    o("v_add_u32 v11, v11, v12")
o(f"ds_write_b32 v13, v11 offset:{NST}")
o(f"ds_write_b32 v13, v11 offset:{CUR}")
lab("B_s2")
o("s_waitcnt lgkmcnt(0)")
o("s_barrier")
pass_loop(True)
o("s_mov_b32 s56, 0")
o("s_mov_b32 s57, 0")
o("s_mov_b32 s58, 0")
o("s_mov_b32 s59, 0")
o("s_mov_b32 s48, 0x05040100")
o("s_mov_b32 s49, 0x07060302")
o("s_lshl_b32 s79, s61, 11")
o(f"s_add_u32 s79, s79, {STG}")
for k in range(16): o(f"v_mov_b32 v{ACC+k}, 0")
o("v_mov_b32 v101, 0x80000000")
o("v_mov_b32 v100, -1")

def next_issue(bi):
    st = ST + 3*bi
    h, dn, go = U("nh"), U("nd"), U("ng")
    o("s_cmp_lt_u32 s56, s57")
    o(f"s_cbranch_scc1 {h}")
    o("s_mov_b64 exec, 1")
    o("v_mov_b32 v10, 0")
    o(f"ds_add_rtn_u32 v10, v10, v102 offset:{CTR}")
    o("s_waitcnt lgkmcnt(0)")
    o("v_readfirstlane_b32 s58, v10")
    o("s_mov_b64 exec, -1")
    o("s_cmp_ge_u32 s58, s60")
    o(f"s_cbranch_scc1 {dn}")
    o("s_lshl_b32 s52, s58, 2")
    o("v_mov_b32 v10, s52")
    o(f"ds_read2_b32 v[10:11], v10 offset0:0 offset1:1")
    L[-1] = f"    ds_read2_b32 v[10:11], v12 offset0:0 offset1:1"
    L.insert(len(L)-1, f"    v_add_u32 v12, {NST}, v10")
    o("s_waitcnt lgkmcnt(0)")
    o("v_readfirstlane_b32 s56, v10")
    o("v_readfirstlane_b32 s57, v11")
    o(f"s_branch {h}")
    lab(dn)
    o("s_mov_b32 s58, -1")
    o("s_mov_b32 s56, 0")
    o("s_mov_b32 s57, 0")
    lab(h)
    o(f"s_mov_b32 s{st}, s56")
    o(f"s_mov_b32 s{st+1}, s57")
    o(f"s_mov_b32 s{st+2}, s58")
    o("s_add_u32 s56, s56, 8")
    o(f"v_add_u32 v10, s{st}, v{VG2}")
    o("v_lshlrev_b32 v11, 2, v10")
    o(f"v_add_u32 v11, {LSRC}, v11")
    o(f"ds_read2_b32 v[12:13], v11 offset0:0 offset1:1")
    o("v_add_u32 v11, 1, v10")
    o(f"v_cmp_gt_u32 vcc, s{st+1}, v10")
    o(f"v_cmp_gt_u32 s[54:55], s{st+1}, v11")
    o("s_waitcnt lgkmcnt(0)")
    o(f"v_lshl_add_u32 v12, v12, 9, v{VI8}")
    o(f"v_lshl_add_u32 v13, v13, 9, v{VI8}")
    o("v_cndmask_b32 v12, v101, v12, vcc")
    o("v_cndmask_b32 v13, v101, v13, s[54:55]")
    b = BUF + 16*bi
    for u in range(4):
        o(f"buffer_load_dwordx2 v[{b+2*u}:{b+2*u+1}], v12, s[{SX}:{SX+3}], 0 offen offset:{128*u}")
    for u in range(4):
        o(f"buffer_load_dwordx2 v[{b+8+2*u}:{b+9+2*u}], v13, s[{SX}:{SX+3}], 0 offen offset:{128*u}")

def flush():
    o("v_lshlrev_b32 v10, 7, v5")
    o("v_lshl_add_u32 v10, v6, 4, v10")
    o("v_add_u32 v10, s79, v10")
    o(f"ds_read_b128 v[{T0}:{T0+3}], v10")
    o(f"ds_read_b128 v[{T0+4}:{T0+7}], v10 offset:64")
    o("v_lshlrev_b32 v11, 4, v4")
    for j in range(4):
        o(f"ds_read_b128 v[{BP}:{BP+3}], v11 offset:{WFR+2048*j}")
        o(f"ds_read_b128 v[{F}:{F+3}], v11 offset:{WFR+2048*j+1024}")
        o("s_waitcnt lgkmcnt(0)")
        o(f"v_mfma_f32_16x16x32_bf16 v[{AH}:{AH+3}], v[{BP}:{BP+3}], v[{T0}:{T0+3}], 0")
        o(f"v_mfma_f32_16x16x32_bf16 v[{AH}:{AH+3}], v[{F}:{F+3}], v[{T0+4}:{T0+7}], v[{AH}:{AH+3}]")
        o("s_nop 9")
        o(f"v_cvt_pk_bf16_f32 v{T0+8+2*j}, v{AH}, v{AH+1}")
        o(f"v_cvt_pk_bf16_f32 v{T0+9+2*j}, v{AH+2}, v{AH+3}")
    o("v_lshrrev_b32 v10, 2, v5")
    o("v_lshlrev_b32 v10, 2, v10")
    o("ds_bpermute_b32 v10, v10, v100")
    o("v_and_b32 v11, 3, v5")
    o("v_lshlrev_b32 v11, 7, v11")
    o("v_lshl_add_u32 v11, v6, 5, v11")
    o("s_waitcnt lgkmcnt(0)")
    o("v_cmp_gt_u32 vcc, 0x10000, v10")
    o("v_lshl_add_u32 v10, v10, 9, v11")
    o("s_nop 0")
    o("v_cndmask_b32 v10, v101, v10, vcc")
    o(f"buffer_store_dwordx4 v[{T0+8}:{T0+11}], v10, s[{SO}:{SO+3}], 0 offen")
    o(f"buffer_store_dwordx4 v[{T0+12}:{T0+15}], v10, s[{SO}:{SO+3}], 0 offen offset:16")
    o("s_nop 1")
    o("v_mov_b32 v100, -1")
    o("s_mov_b32 s59, 0")

def compute(bi):
    st = ST + 3*bi
    b = BUF + 16*bi
    o(f"s_cmp_eq_u32 s{st+2}, -1")
    o("s_cbranch_scc1 B_done")
    o(f"v_add_u32 v10, s{st}, v{VG2}")
    o("v_lshlrev_b32 v11, 4, v10")
    o(f"ds_read_b128 v[{F}:{F+3}], v11 offset:{LF}")
    o(f"ds_read_b128 v[{F+4}:{F+7}], v11 offset:{LF+16}")
    o("v_add_u32 v11, 1, v10")
    o(f"v_cmp_gt_u32 vcc, s{st+1}, v10")
    o(f"v_cmp_gt_u32 s[54:55], s{st+1}, v11")
    o("s_waitcnt lgkmcnt(0)")
    for e in range(2):
        f = F + 4*e
        t = T0
        o(f"v_lshlrev_b32 v{t}, 16, v{f}")
        o(f"v_and_b32 v{t+1}, 0xffff0000, v{f}")
        o(f"v_lshlrev_b32 v{t+2}, 16, v{f+1}")
        o(f"v_and_b32 v{t+3}, 0xffff0000, v{f+1}")
        o(f"v_cndmask_b32 v{t+4}, v{f+2}, v{f+3}, s[62:63]")
        o(f"v_lshlrev_b32 v{t+4}, v{VSH}, v{t+4}")
        o(f"v_and_b32 v{t+4}, 0xffff0000, v{t+4}")
        o(f"v_cndmask_b32 v{t+4}, 0, v{t+4}, " + ("vcc" if e == 0 else "s[54:55]"))
        for u in range(4):
            c = t + 8 + 4*e + u
            o(f"v_mul_f32 v{c}, v{CG+4*u}, v{t}")
            for v in range(1, 4):
                o(f"v_fmac_f32 v{c}, v{CG+4*u+v}, v{t+v}")
            o(f"v_mul_f32 v{c}, v{c}, v{t+4}")
    for r in range(4):
        c0, c1 = T0+8+2*r, T0+9+2*r
        o(f"v_cvt_pk_bf16_f32 v{AH+r}, v{c0}, v{c1}")
        o(f"v_lshlrev_b32 v10, 16, v{AH+r}")
        o(f"v_and_b32 v11, 0xffff0000, v{AH+r}")
        o(f"v_sub_f32 v10, v{c0}, v10")
        o(f"v_sub_f32 v11, v{c1}, v11")
        o(f"v_cvt_pk_bf16_f32 v{AL+r}, v10, v11")
    o(f"s_waitcnt vmcnt({8*(D-1)})")
    for j in range(4):
        sel = "s48" if (j & 1) == 0 else "s49"
        for r in range(4):
            o(f"v_perm_b32 v{BP+r}, v{b+2*(2*r+1)+(j>>1)}, v{b+2*(2*r)+(j>>1)}, {sel}")
        o("s_nop 1")
        o(f"v_mfma_f32_16x16x32_bf16 v[{ACC+4*j}:{ACC+4*j+3}], v[{AH}:{AH+3}], v[{BP}:{BP+3}], v[{ACC+4*j}:{ACC+4*j+3}]")
        o(f"v_mfma_f32_16x16x32_bf16 v[{ACC+4*j}:{ACC+4*j+3}], v[{AL}:{AL+3}], v[{BP}:{BP+3}], v[{ACC+4*j}:{ACC+4*j+3}]")
    nl = U("nl")
    o(f"s_add_u32 s52, s{st}, 8")
    o(f"s_cmp_lt_u32 s52, s{st+1}")
    o(f"s_cbranch_scc1 {nl}")
    o("s_nop 9")
    for j in range(4):
        o(f"v_mul_f32 v{T0+j}, v{WR+j}, v{ACC+4*j}")
        for r in range(1, 4):
            o(f"v_fmac_f32 v{T0+j}, v{WR+4*r+j}, v{ACC+4*j+r}")
    f1, f2 = U("f1"), U("f2")
    o("s_cmp_eq_u32 s89, 1")
    o(f"s_cbranch_scc1 {f2}")
    o(f"s_lshl_b32 s52, s{st+2}, 10")
    o("s_add_u32 s52, s52, s91")
    o("v_lshlrev_b32 v10, 8, v6")
    o("v_lshl_add_u32 v10, v5, 4, v10")
    o("v_add_u32 v10, s52, v10")
    o("s_cmp_eq_u32 s90, 0")
    o(f"s_cbranch_scc1 {f1}")
    o(f"buffer_load_dwordx4 v[{T0+4}:{T0+7}], v10, s[84:87], 0 offen sc1")
    o("s_waitcnt vmcnt(0)")
    for j in range(4): o(f"v_add_f32 v{T0+j}, v{T0+j}, v{T0+4+j}")
    lab(f1)
    o("s_add_u32 s52, s90, 1")
    o("s_cmp_eq_u32 s52, s89")
    o(f"s_cbranch_scc1 {f2}")
    o(f"buffer_store_dwordx4 v[{T0}:{T0+3}], v10, s[84:87], 0 offen")
    for k in range(16): o(f"v_mov_b32 v{ACC+k}, 0")
    o(f"s_branch {nl}")
    lab(f2)
    o(f"v_cvt_pk_bf16_f32 v{T0+4}, v{T0}, v{T0+1}")
    o(f"v_cvt_pk_bf16_f32 v{T0+5}, v{T0+2}, v{T0+3}")
    o("s_lshl_b32 s52, s59, 9")
    o("s_add_u32 s52, s52, s79")
    o("v_lshlrev_b32 v10, 7, v6")
    o(f"v_add_u32 v10, v10, v{VI8}")
    o("v_add_u32 v10, s52, v10")
    o(f"ds_write_b64 v10, v[{T0+4}:{T0+5}]")
    for k in range(16): o(f"v_mov_b32 v{ACC+k}, 0")
    o(f"s_add_u32 s52, s{st+2}, s3")
    o("s_mov_b32 m0, s59")
    o("s_nop 0")
    o("v_writelane_b32 v100, s52, m0")
    o("s_add_u32 s59, s59, 1")
    o("s_cmp_lt_u32 s59, 4")
    o(f"s_cbranch_scc1 {nl}")
    flush()
    lab(nl)

for bi in range(D-1): next_issue(bi)
lab("B_loop")
for s in range(D):
    next_issue((s + D - 1) % D)
    compute(s)
o("s_branch B_loop")
lab("B_done")
o("s_cmp_eq_u32 s59, 0")
o("s_cbranch_scc1 B_nf")
flush()
lab("B_nf")
o("s_add_u32 s90, s90, 1")
o("s_cmp_ge_u32 s90, s89")
o("s_cbranch_scc1 B_end")
o("s_waitcnt vmcnt(0)")
o("s_barrier")
o("s_branch R_loop")
lab("B_end")
o("s_endpgm")

out += L
def desc(name, vg):
    return f""".amdhsa_kernel {name}
  .amdhsa_next_free_vgpr {vg}
  .amdhsa_next_free_sgpr 102
  .amdhsa_accum_offset {vg}
  .amdhsa_group_segment_fixed_size 0
  .amdhsa_kernarg_size 88
  .amdhsa_user_sgpr_count 2
  .amdhsa_user_sgpr_kernarg_segment_ptr 1
  .amdhsa_system_sgpr_workgroup_id_x 1
.end_amdhsa_kernel"""
out.append('.section .rodata,"a"\n.p2align 6')
out.append(desc("sort_kernel", 64))
out.append(".p2align 6")
out.append(desc("main_kernel", 256))
open('gather_scatter__tensor_product_equiv_mace__graph_d2.s', 'w').write("\n".join(out) + "\n")
```
